```python
import torch

def _softmax(x, axis=-1):
    return torch.softmax(x, dim=axis)
def _gelu(x):
    return torch.nn.functional.gelu(x, approximate="tanh")
def _silu(x):
    return torch.nn.functional.silu(x)
def _sigmoid(x):
    return torch.sigmoid(x)
def _layernorm(x, axis=-1, eps=1e-5):
    m = x.mean(dim=axis, keepdim=True)
    v = x.var(dim=axis, keepdim=True, unbiased=False)
    return (x - m) / torch.sqrt(v + eps)
def _scatter_add(tgt, idx, src, axis=0):
    return tgt.clone().index_add_(axis, idx, src)
def _segment_sum(src, seg, n):
    out = torch.zeros((n,) + src.shape[1:], dtype=src.dtype)
    return out.index_add_(0, seg, src)
def _pad(x, pw):
    flat = tuple(v for pair in reversed(pw) for v in pair)
    return torch.nn.functional.pad(x, flat)

kernel_name = 'interleave_layers__softmax_full_mha__moe_arch_mod__prompt'

def setup_inputs():

    _w = (lambda a: (lambda t: t.to(torch.bfloat16) if t.is_floating_point() else t)(torch.as_tensor(a)))
    def _A_setup():
        B, S, D = 1, 2048, 512
        return {
            "x": _w((lambda *s: torch.randn(*s, dtype=torch.bfloat16) * 0.05)(B, S, D)),
            "wqkv": _w((lambda *s: torch.randn(*s, dtype=torch.bfloat16) * 0.05)(D, 3 * D)),
            "wo": _w((lambda *s: torch.randn(*s, dtype=torch.bfloat16) * 0.05)(D, D)),
        }
    _A_in = _A_setup()

    def _B_setup():
        B, S, D, F, C = 1, 2048, 512, 1792, 1
        return {
            "x": _w((lambda *s: torch.randn(*s, dtype=torch.bfloat16) * 0.05)(B, S, D)),
            "w_r": _w((lambda *s: torch.randn(*s, dtype=torch.bfloat16) * 0.05)(D)),
            "w_gate": _w((lambda *s: torch.randn(*s, dtype=torch.bfloat16) * 0.05)(D, F)),
            "w_up": _w((lambda *s: torch.randn(*s, dtype=torch.bfloat16) * 0.05)(D, F)),
            "w_down": _w((lambda *s: torch.randn(*s, dtype=torch.bfloat16) * 0.05)(F, D)),
        }
    _B_in = _B_setup()

    return {
        "A_x": _A_in["x"],
        "A_wqkv": _A_in["wqkv"],
        "A_wo": _A_in["wo"],
        "B_x": _B_in["x"],
        "B_w_r": _B_in["w_r"],
        "B_w_gate": _B_in["w_gate"],
        "B_w_up": _B_in["w_up"],
        "B_w_down": _B_in["w_down"],
    }

def reference(A_x, A_wqkv, A_wo, B_x, B_w_r, B_w_gate, B_w_up, B_w_down):
    def _A_ref(x, wqkv, wo):
        B, S, D = x.shape
        H = 32; Dh = D // H
        qkv = (lambda x, *d: x.permute(*d))((x @ wqkv).reshape(B, S, 3, H, Dh), 2, 0, 3, 1, 4)
        q, k, v = qkv[0], qkv[1], qkv[2]
        scale = Dh ** -0.5
        scores = torch.einsum("bhqd,bhkd->bhqk", q, k) * scale
        p = _softmax(scores, axis=-1)
        o = torch.einsum("bhqk,bhkd->bhqd", p, v)
        return (lambda x, *d: x.permute(*d))(o, 0, 2, 1, 3).reshape(B, S, D) @ wo

    def _B_ref(x, w_r, w_gate, w_up, w_down):
        B, S, D = x.shape
        C = 1
        r = x @ w_r
        idx = torch.argsort(-r, axis=-1)[:, :C]
        idx_e = (lambda x, n, axis: torch.repeat_interleave(x, n, dim=axis))(idx.reshape(B, C, 1), D, axis=2)
        x_sel = (lambda x, i, axis: torch.take_along_dim(x, i, dim=axis))(x, idx_e, axis=1)
        g = _silu(x_sel @ w_gate)
        u = x_sel @ w_up
        y = (g * u) @ w_down
        r_sel = _sigmoid((lambda x, i, axis: torch.take_along_dim(x, i, dim=axis))(r, idx, axis=1))
        y = y * r_sel.reshape(B, C, 1)
        b_off = (torch.arange(B) * S).reshape(B, 1)
        flat_idx = (idx + b_off).reshape(B * C)
        zero = (x * 0.0).reshape(B * S, D)
        upd = _scatter_add(zero, flat_idx, y.reshape(B * C, D), axis=0)
        return x + upd.reshape(B, S, D)

    x = A_x
    x = x + _A_ref(_layernorm(x, axis=-1), A_wqkv, A_wo)
    x = x + _B_ref(_layernorm(x, axis=-1), B_w_r, B_w_gate, B_w_up, B_w_down)
    x = x + _A_ref(_layernorm(x, axis=-1), A_wqkv, A_wo)
    x = x + _B_ref(_layernorm(x, axis=-1), B_w_r, B_w_gate, B_w_up, B_w_down)
    return x
```

```python
import re

TRANS = ("v_exp_f32","v_log_f32","v_rcp_f32","v_rsq_f32","v_sqrt_f32","v_sin_f32","v_cos_f32","v_rcp_iflag_f32",
         "v_exp_f16","v_log_f16","v_rcp_f16","v_rsq_f16","v_sqrt_f16")
REG = re.compile(r"\b([vsa])\[(\d+):(\d+)\]|\b([vsa])(\d+)\b|\b(vcc|exec|m0|vcc_lo|vcc_hi|exec_lo|exec_hi)\b")

def regs_of(tok):
    out = set()
    for m in REG.finditer(tok):
        if m.group(1):
            for i in range(int(m.group(2)), int(m.group(3))+1): out.add((m.group(1), i))
        elif m.group(4):
            out.add((m.group(4), int(m.group(5))))
        else:
            n = m.group(6)
            if n.startswith("vcc"): out.add(("vcc",0))
            elif n.startswith("exec"): out.add(("exec",0))
            else: out.add(("m0",0))
    return out

def split_ops(rest):
    ops=[]; cur=""; d=0
    for ch in rest:
        if ch=="[": d+=1
        if ch=="]": d-=1
        if ch=="," and d==0:
            ops.append(cur.strip()); cur=""
        else: cur+=ch
    if cur.strip(): ops.append(cur.strip())
    return ops

class Ins:
    def __init__(self, text):
        self.text = text
        t = text.split(";")[0].strip()
        self.label = None
        if t.endswith(":"):
            self.label = t[:-1]; self.kind="label"; return
        if t.startswith("."):
            self.kind="dir"; return
        parts = t.split(None,1)
        self.mn = mn = parts[0]
        rest = parts[1] if len(parts)>1 else ""
        ops = split_ops(rest)
        self.ops = ops
        self.mods = ""
        if ops:
            last = ops[-1].split(None,1)
            if len(last)>1 and not last[0].endswith(("(",)) :
                ops[-1]=last[0]; self.mods=last[1]
        self.wr=set(); self.rd=set()
        self.dpp = ("row_" in self.mods or "quad_perm" in self.mods or "wave_" in self.mods or "_dpp" in mn)
        self.passes=0
        self.trans=False
        base = re.sub(r"_(e32|e64|dpp|sdwa)$","",mn)
        self.base=base
        if mn.startswith(("v_mfma","v_smfmac")):
            self.kind="mfma"
            self.passes = 8 if "32x32" in mn else 4
            self.D=regs_of(ops[0]); self.A=regs_of(ops[1]); self.B=regs_of(ops[2])
            if mn.startswith("v_smfmac"):
                self.C=set(self.D); self.idx=regs_of(ops[3])
            else:
                self.C=regs_of(ops[3]); self.idx=set()
            self.wr=set(self.D); self.rd=self.A|self.B|self.C|self.idx
        elif mn.startswith("v_"):
            self.kind="valu"
            self.trans = base in TRANS
            if base.startswith("v_cmp"):
                self.wr=regs_of(ops[0]);
                for o in ops[1:]: self.rd|=regs_of(o)
                if base.startswith("v_cmpx"): self.wr.add(("exec",0))
            elif base in ("v_permlane32_swap_b32","v_permlane16_swap_b32","v_swap_b32"):
                self.wr=regs_of(ops[0])|regs_of(ops[1]); self.rd=set(self.wr)
            elif base in ("v_add_co_u32","v_sub_co_u32","v_subrev_co_u32","v_addc_co_u32","v_subb_co_u32","v_div_scale_f32","v_mad_u64_u32"):
                self.wr=regs_of(ops[0])|regs_of(ops[1])
                for o in ops[2:]: self.rd|=regs_of(o)
            elif base=="v_nop":
                pass
            else:
                self.wr=regs_of(ops[0])
                for o in ops[1:]: self.rd|=regs_of(o)
                if base in ("v_fmac_f32","v_dot2c_f32_bf16","v_fmac_f16","v_pk_fmac_f16","v_writelane_b32") or self.dpp or "sdwa" in mn:
                    self.rd|=regs_of(ops[0])
                if base=="v_cndmask_b32" and len(ops)==3: self.rd.add(("vcc",0))
                if base=="v_div_fmas_f32": self.rd.add(("vcc",0))
        elif mn.startswith(("buffer_","global_","flat_")):
            self.kind="vmem"
            self.lds = bool(re.search(r"\blds\b", self.mods)) or "load_lds" in mn
            self.store = "store" in mn or "atomic" in mn
            if "wbl2" in mn or mn.startswith("buffer_inv"):
                pass
            elif self.lds:
                for o in ops: self.rd|=regs_of(o)
                self.rd.add(("m0",0))
            elif "load" in mn:
                self.wr=regs_of(ops[0])
                for o in ops[1:]: self.rd|=regs_of(o)
            else:
                for o in ops: self.rd|=regs_of(o)
                if "atomic" in mn and "sc0" in self.mods and mn.startswith("buffer_"): self.wr=regs_of(ops[0])
                if mn.startswith("buffer_"): self.data=regs_of(ops[0])
                else: self.data=regs_of(ops[1]) if "atomic" not in mn or "sc0" not in self.mods else regs_of(ops[2])
            self.wide = self.store and ("x3" in mn or "x4" in mn)
        elif mn.startswith("ds_"):
            self.kind="ds"
            if "read" in mn or "permute" in mn or "swizzle" in mn or "_rtn" in mn:
                self.wr=regs_of(ops[0])
                for o in ops[1:]: self.rd|=regs_of(o)
            else:
                for o in ops: self.rd|=regs_of(o)
        elif mn.startswith("s_"):
            self.kind="salu"
            if mn in ("s_nop",):
                self.kind="nop"; self.n=int(ops[0],0)+1
            elif mn.startswith(("s_cbranch","s_branch")):
                self.kind="branch"; self.target=ops[0]
            elif mn.startswith(("s_waitcnt","s_barrier","s_endpgm","s_sleep","s_setprio","s_cmp","s_bitcmp")):
                for o in ops: self.rd|=regs_of(o)
            else:
                self.wr=regs_of(ops[0])
                for o in ops[1:]: self.rd|=regs_of(o)
                if "saveexec" in mn: self.wr.add(("exec",0)); self.rd.add(("exec",0))
        else:
            raise ValueError("unknown instruction: "+text)

def need(prev, cur):
    n=0
    pk, ck = prev.kind, cur.kind
    if pk=="valu":
        vw = {r for r in prev.wr if r[0] in "va" and r[0]!="vcc"}
        vw = {r for r in prev.wr if r[0] in ("v","a")}
        sw = {r for r in prev.wr if r[0] in ("s","vcc")}
        if ck=="mfma" and vw & cur.rd: n=max(n,2)
        if ck=="mfma" and ("exec",0) in prev.wr: n=max(n,4)
        if ck=="valu":
            if prev.trans and not cur.trans and vw & cur.rd: n=max(n,1)
            if cur.base in ("v_readlane_b32","v_readfirstlane_b32") and vw & cur.rd: n=max(n,1)
            if cur.base.startswith("v_permlane") and vw & cur.rd: n=max(n,2)
            if cur.dpp and vw & cur.rd: n=max(n,2)
            if sw & cur.rd:
                n=max(n, 4 if cur.base in ("v_readlane_b32","v_writelane_b32","v_div_fmas_f32") else 2)
            if ("sdwa" in prev.mn or "op_sel" in prev.mods and not prev.base.startswith("v_pk")) and vw & (cur.rd|cur.wr): n=max(n,1)
            if ("exec",0) in prev.wr: n=max(n,5)
        if prev.base.startswith("v_dot") and ck in ("valu","mfma","vmem","ds"):
            if vw & (cur.rd|cur.wr):
                same = ck=="valu" and cur.base==prev.base
                if same:
                    srcs=set()
                    for o in (cur.ops[1:3]): srcs|=regs_of(o)
                    if vw & srcs: n=max(n,3)
                else: n=max(n,3)
        if ck=="vmem" and sw & cur.rd: n=max(n,5)
        if ck=="salu" and sw & cur.rd: n=max(n,1)
    if pk=="mfma":
        big = 12 if prev.passes==8 else 8
        if ck=="mfma":
            if prev.D & (cur.A|cur.B|cur.idx): n=max(n,big)
            if prev.D & cur.C:
                if prev.D==cur.C and prev.passes==cur.passes: pass
                else: n=max(n, 10 if prev.passes==8 else 6)
            elif prev.D & cur.D:
                n=max(n, 10 if prev.passes==8 else 6)
        elif ck in ("valu","vmem","ds"):
            if prev.D & (cur.rd|cur.wr): n=max(n,big)
            if ck=="valu" and prev.C & cur.wr: n=max(n, 7 if prev.passes==8 else 3)
    if pk=="vmem" and getattr(prev,"wide",False):
        if prev.data & cur.wr and ck in ("valu","mfma"): n=max(n,2)
        elif prev.data & cur.wr: n=max(n,1)
    if pk=="salu" and ("m0",0) in prev.wr:
        if ck=="vmem" and cur.lds: n=max(n,1)
        if ck=="ds" and "addtid" in cur.mn: n=max(n,1)
    return n

WINDOW=20
def states(i): return i.n if i.kind=="nop" else (0 if i.kind in("label","dir") else 1)

def fix_hazards(lines, name=""):
    ins=[Ins(l) for l in lines]
    out=[]
    for cur in ins:
        if cur.kind not in ("label","dir","nop"):
            dist=0; req=0
            for p in reversed(out):
                if dist>=WINDOW: break
                if p.kind not in ("label","dir","nop"):
                    r=need(p,cur)
                    if r>dist: req=max(req,r-dist)
                dist+=states(p)
                if p.kind=="branch" and p.mn=="s_branch": break
            while req>0:
                k=min(req,16)
                out.append(Ins(f"    s_nop {k-1}"))
                req-=k
        out.append(cur)
    pos={i.label:n for n,i in enumerate(out) if i.kind=="label"}
    for n,b in enumerate(out):
        if b.kind=="branch":
            t=pos.get(b.target)
            if t is None: raise ValueError(f"{name}: unknown label {b.target}")
            hist=[x for x in out[max(0,n-3*WINDOW):n+1]]
            d0=0
            seq=[]
            for c in out[t:t+3*WINDOW]:
                if c.kind not in ("label","dir","nop"):
                    dist=d0
                    for p in reversed(hist):
                        if dist>=WINDOW: break
                        if p.kind not in ("label","dir","nop"):
                            r=need(p,c)
                            if r>dist:
                                raise ValueError(f"{name}: hazard across branch {b.text.strip()} : [{p.text.strip()}] -> [{c.text.strip()}] need {r} have {dist}")
                        dist+=states(p)
                d0+=states(c)
                if d0>=WINDOW: break
                if c.kind=="branch" and c.mn=="s_branch": break
    return [i.text for i in out]

class Kern:
    def __init__(self, name, vgpr, sgpr=96):
        self.name=name; self.lines=[]; self.vgpr=vgpr; self.sgpr=sgpr; self.nl=0
    def e(self, s):
        for l in s.strip("\n").split("\n"):
            l=l.strip()
            if not l or l.startswith(";"): continue
            self.lines.append(l if l.endswith(":") else "    "+l)
    def lab(self, base):
        self.nl+=1
        return f"L_{self.name[:-7]}_{base}_{self.nl}"
    def text(self):
        body=fix_hazards(self.lines, self.name)
        mv=0; ms=0
        for l in body:
            for r in regs_of(l.split(";")[0]):
                if r[0]=="v": mv=max(mv,r[1]+1)
                if r[0]=="s": ms=max(ms,r[1]+1)
        assert mv<=self.vgpr, (self.name, mv, self.vgpr)
        assert ms<=self.sgpr, (self.name, ms, self.sgpr)
        self.used=(mv,ms)
        return f".globl {self.name}\n.p2align 8\n.type {self.name},@function\n{self.name}:\n" + "\n".join(body) + "\n"
    def desc(self):
        v=(self.vgpr+3)//4*4
        return f""".p2align 6
.amdhsa_kernel {self.name}
  .amdhsa_next_free_vgpr {self.vgpr}
  .amdhsa_next_free_sgpr {self.sgpr}
  .amdhsa_accum_offset {v}
  .amdhsa_group_segment_fixed_size 0
  .amdhsa_kernarg_size 88
  .amdhsa_user_sgpr_count 2
  .amdhsa_user_sgpr_kernarg_segment_ptr 1
  .amdhsa_system_sgpr_workgroup_id_x 1
.end_amdhsa_kernel
"""
```

```python
import sys
from asmlib import Kern

MB = 1<<20
QF   = 0
KV   = 2*MB
OF   = 6*MB
X1F  = 8*MB
X3F  = 10*MB
STATS= 12*MB
MISC = 12*MB + 65536
SUMW = MISC
SELI = MISC + 256
XS   = MISC + 1024
X1R  = MISC + 2048
X2S  = MISC + 3072
HV   = MISC + 4096
WS_BYTES = 13*MB
ONES = 0x3f803f80
EPS  = 0x3727c5ac
QSCALE = 0x3eb8aa3b
LOG2E = 0x3fb8aa3b

def srd(k, d, lo, nbytes):
    k.e(f"""
    s_mov_b32 s{d}, s{lo}
    s_and_b32 s{d+1}, s{lo+1}, 0xffff
    s_mov_b32 s{d+2}, {nbytes}
    s_mov_b32 s{d+3}, 0x00020000
    """)

def rnd(k, v, t=None):
    k.e(f"v_cvt_pk_bf16_f32 v{v}, v{v}, v{v}\nv_and_b32 v{v}, 0xffff0000, v{v}")

def rowparams(k, s1, s2, m, rd, t):
    k.e(f"""
    v_mul_f32 v{s1}, 0x3b000000, v{s1}
    v_mul_f32 v{s2}, 0x3b000000, v{s2}
    v_fma_f32 v{s2}, -v{s1}, v{s1}, v{s2}
    v_max_f32 v{s2}, 0, v{s2}
    v_cvt_pk_bf16_f32 v{m}, v{s1}, v{s2}
    v_and_b32 v{t}, 0xffff0000, v{m}
    v_lshlrev_b32 v{m}, 16, v{m}
    v_add_f32 v{t}, {EPS}, v{t}
    """)
    rnd(k, t)
    k.e(f"v_sqrt_f32 v{t}, v{t}")
    rnd(k, t)
    k.e(f"v_rcp_f32 v{rd}, v{t}")

def wave_ids(k):
    k.e("""
    v_and_b32 v1, 63, v0
    v_lshrrev_b32 v2, 6, v0
    v_readfirstlane_b32 s22, v2
    """)

def gen_qkv(name, layer):
    k = Kern(name, 168)
    L1 = layer == 0
    XR = 16
    AC = 80
    WF = 128
    EX, SM = 98304, 147456
    CS, RS, AB, SW = SM, SM+512, SM+1536, SM+2560
    end = k.lab("end")
    k.e(f"""
    s_cmp_ge_u32 s2, 256
    s_cbranch_scc1 {end}
    s_load_dwordx4 s[4:7], s[0:1], 0
    s_load_dwordx2 s[20:21], s[0:1], 80
    s_load_dwordx2 s[40:41], s[0:1], 32
    """)
    wave_ids(k)
    k.e(f"""
    s_and_b32 s25, s2, 7
    s_lshr_b32 s26, s2, 3
    s_lshr_b32 s27, s26, 4
    s_lshl_b32 s25, s25, 1
    s_add_u32 s25, s25, s27          ; cb
    s_and_b32 s26, s26, 15           ; rb
    s_and_b32 s23, s22, 3            ; tt
    s_lshr_b32 s24, s22, 2           ; kh
    v_mov_b32 v3, 0
    v_lshlrev_b32 v2, 2, v0
    v_add_u32 v2, {SM}, v2
    ds_write_b32 v2, v3
    ds_write_b32 v2, v3 offset:2048
    v_lshrrev_b32 v2, 2, v1
    v_mul_u32_u24 v2, 3072, v2
    v_and_b32 v3, 3, v1
    v_lshl_add_u32 v4, v3, 4, v2
    s_lshl_b32 s28, s24, 8
    s_lshl_b32 s29, s23, 4
    s_add_u32 s28, s28, s29
    s_mul_i32 s30, s28, 3072
    s_lshl_b32 s29, s25, 6
    s_add_u32 s30, s30, s29
    s_lshl_b32 s31, s28, 6
    s_lshl_b32 s32, s26, 2
    s_add_u32 s32, s32, s23
    """)
    if L1:
        k.e(f"""
        v_and_b32 v2, 31, v1
        v_lshlrev_b32 v2, 10, v2
        v_lshrrev_b32 v3, 5, v1
        v_lshl_add_u32 v5, v3, 6, v2     ; v5 = X voffset
        s_lshl_b32 s33, s32, 15
        s_lshl_b32 s29, s24, 9
        s_add_u32 s33, s33, s29          ; X soffset
        """)
    else:
        k.e(f"""
        v_lshlrev_b32 v5, 4, v1
        s_lshl_b32 s33, s32, 15
        s_lshl_b32 s29, s24, 14
        s_add_u32 s33, s33, s29
        s_add_u32 s33, s33, {X1F}
        """)
    k.e("s_waitcnt lgkmcnt(0)")
    srd(k, 12, 6, 512*1536*2)
    srd(k, 16, 20, WS_BYTES)
    if L1:
        srd(k, 8, 4, 2048*512*2)
        XS_ = "s[8:11]"
    else:
        XS_ = "s[16:19]"
    nextra = 0
    if not L1:
        k.e(f"""
        v_and_b32 v2, 31, v1
        v_lshlrev_b32 v2, 2, v2
        s_lshl_b32 s34, s32, 7
        s_add_u32 s34, s34, {STATS}
        s_add_u32 s35, s34, 8192
        buffer_load_dword v10, v2, s[16:19], s34 offen
        buffer_load_dword v11, v2, s[16:19], s35 offen
        """)
    for q in range(4):
        for st in range(3):
            k.e(f"""
            s_add_u32 s34, s30, {q*64*3072 + st*1024}
            s_add_u32 s35, s31, {st*32768 + q*4096}
            s_mov_b32 m0, s35
            buffer_load_dwordx4 v4, s[12:15], s34 offen lds
            """)
        if L1:
            for u in range(4):
                r = XR + (q*4+u)*4
                k.e(f"buffer_load_dwordx4 v[{r}:{r+3}], v5, {XS_}, s33 offen offset:{q*128+u*16}")
        else:
            k.e(f"s_add_u32 s34, s33, {q*4096}")
            for u in range(4):
                r = XR + (q*4+u)*4
                k.e(f"buffer_load_dwordx4 v[{r}:{r+3}], v5, {XS_}, s34 offen offset:{u*1024}")
    rowmul = 32 if L1 else 4
    k.e(f"""
    v_lshrrev_b32 v2, 5, v1              ; hh
    v_mul_u32_u24 v2, {rowmul}, v2
    v_bfe_u32 v3, v1, 2, 2               ; r
    v_add_u32 v2, v2, v3
    v_lshlrev_b32 v2, 6, v2
    v_bfe_u32 v3, v1, 4, 1
    v_lshl_add_u32 v2, v3, 5, v2
    v_and_b32 v3, 3, v1
    v_lshl_add_u32 v2, v3, 3, v2
    s_lshl_b32 s34, s24, 14
    v_add_u32 v6, s34, v2
    v_add_u32 v7, 0x10000, v6            ; v7 = strip 2
    s_mov_b32 s36, {ONES}
    """)
    for r in range(AC, AC+48): k.e(f"v_mov_b32 v{r}, 0")
    k.e("v_mov_b32 v12, 0\nv_mov_b32 v13, 0\nv_mov_b32 v14, 0")
    if L1: k.e("v_mov_b32 v10, 0\nv_mov_b32 v11, 0")
    def reads(q,u):
        b = WF + (u&1)*12
        for st in range(3):
            for sec in range(2):
                row = q*64 + (8*u+4*sec if L1 else 16*u+8*sec)
                off = (st&1)*32768 + row*64
                a = "v7" if st==2 else "v6"
                d = b+st*4+sec*2
                k.e(f"ds_read_b64_tr_b16 v[{d}:{d+1}], {a} offset:{off}")
    def step(q,u):
        b = WF + (u&1)*12
        x = XR + (q*4+u)*4
        k.e(f"""
        v_mfma_f32_32x32x16_bf16 v[{AC}:{AC+15}], v[{b}:{b+3}], v[{x}:{x+3}], v[{AC}:{AC+15}]
        v_mfma_f32_32x32x16_bf16 v[{AC+16}:{AC+31}], v[{b+4}:{b+7}], v[{x}:{x+3}], v[{AC+16}:{AC+31}]
        v_mfma_f32_32x32x16_bf16 v[{AC+32}:{AC+47}], v[{x}:{x+3}], v[{b+8}:{b+11}], v[{AC+32}:{AC+47}]
        """)
        if L1:
            for i in range(4):
                k.e(f"v_dot2c_f32_bf16 v10, s36, v{x+i}\nv_dot2c_f32_bf16 v11, v{x+i}, v{x+i}")
        sk = k.lab("cs")
        k.e(f"s_cmp_lg_u32 s23, {u}\ns_cbranch_scc1 {sk}")
        for i in range(4):
            for st in range(3):
                k.e(f"v_dot2c_f32_bf16 v{12+st}, s36, v{b+st*4+i}")
        k.e(f"{sk}:")
    for q in range(4):
        k.e(f"s_waitcnt vmcnt({7*(3-q)})" + (" lgkmcnt(0)" if q==0 else "") + "\ns_barrier")
        reads(q,0); reads(q,1)
        k.e("s_waitcnt lgkmcnt(6)"); step(q,0)
        reads(q,2)
        k.e("s_waitcnt lgkmcnt(6)"); step(q,1)
        reads(q,3)
        k.e("s_waitcnt lgkmcnt(6)"); step(q,2)
        k.e("s_waitcnt lgkmcnt(0)"); step(q,3)
    k.e(f"""
    v_and_b32 v2, 31, v1
    v_lshlrev_b32 v3, 2, v2
    v_add_u32 v8, {CS}, v3               ; colsum slot (col = l%32)
    ds_add_f32 v8, v12
    ds_add_f32 v8, v13 offset:128
    ds_add_f32 v8, v14 offset:256
    s_lshl_b32 s34, s23, 8
    s_add_u32 s34, s34, {RS}
    v_lshl_add_u32 v9, v2, 3, s34
    """)
    if L1:
        k.e("ds_add_f32 v9, v10\nds_add_f32 v9, v11 offset:4")
    k.e(f"""
    s_mul_i32 s34, s23, 12288
    s_add_u32 s34, s34, {EX}
    v_lshl_add_u32 v15, v1, 4, s34
    """)
    lk1 = k.lab("k1w"); lw = k.lab("wdone")
    k.e(f"s_cmp_eq_u32 s24, 1\ns_cbranch_scc1 {lk1}")
    for i in range(4):
        r = AC+32+4*i
        k.e(f"ds_write_b128 v15, v[{r}:{r+3}] offset:{(8+i)*1024}")
    k.e(f"s_branch {lw}\n{lk1}:\ns_nop 7\ns_nop 3")
    for i in range(8):
        r = AC+4*i
        k.e(f"ds_write_b128 v15, v[{r}:{r+3}] offset:{i*1024}")
    k.e(f"{lw}:")
    if L1:
        l7 = k.lab("w7"); l6 = k.lab("w6")
        srd(k, 44, 40, 1024)
        k.e(f"""
        s_cmp_lg_u32 s22, 7
        s_cbranch_scc1 {l7}
        v_lshlrev_b32 v2, 4, v1
        buffer_load_dwordx4 v[{WF}:{WF+3}], v2, s[44:47], 0 offen
        v_mov_b32 v12, 0
        v_mov_b32 v3, {SW}
        s_waitcnt vmcnt(0)
        """)
        for i in range(4): k.e(f"v_dot2c_f32_bf16 v12, s36, v{WF+i}")
        k.e(f"""
        ds_add_f32 v3, v12
        {l7}:
        s_cmp_lg_u32 s22, 6
        s_cbranch_scc1 {l6}
        s_mul_i32 s34, s2, 192
        s_add_u32 s34, s34, {STATS}
        v_lshlrev_b32 v2, 2, v1
        v_mov_b32 v3, 0
        v_cmp_gt_u32 vcc, 48, v1
        s_and_saveexec_b64 s[38:39], vcc
        buffer_store_dword v3, v2, s[16:19], s34 offen
        s_mov_b64 exec, s[38:39]
        {l6}:
        """)
    k.e("s_waitcnt lgkmcnt(0)\ns_barrier")
    if L1:
        k.e("ds_read_b64 v[10:11], v9\ns_waitcnt lgkmcnt(0)")
        rowparams(k, 10, 11, 12, 13, 14)
        k.e("v_mul_f32 v12, v12, v13")
    else:
        rowparams(k, 10, 11, 12, 13, 14)
        k.e(f"""
        v_add_f32 v14, 1.0, v13               ; g
        v_sub_f32 v2, v10, v12
        v_fma_f32 v10, v2, v13, v10           ; mean(x2)
        v_mul_f32 v11, v11, v14
        v_mul_f32 v11, v11, v14               ; var(x2)
        v_cvt_pk_bf16_f32 v2, v10, v11
        v_and_b32 v3, 0xffff0000, v2
        v_lshlrev_b32 v2, 16, v2              ; m2R
        v_add_f32 v3, {EPS}, v3
        """)
        rnd(k, 3)
        k.e("v_sqrt_f32 v3, v3")
        rnd(k, 3)
        k.e("""
        v_rcp_f32 v3, v3                      ; c2
        v_fma_f32 v12, v12, v13, v2           ; m1R*rd1 + m2R
        v_mul_f32 v12, v12, v3                ; beta
        v_mul_f32 v13, v14, v3                ; alpha
        """)
    lv = k.lab("vep")
    T = XR
    k.e(f"""
    s_lshl_b32 s34, s25, 1                ; head0
    s_cmp_eq_u32 s24, 1
    s_cbranch_scc1 {lv}
    v_lshrrev_b32 v2, 5, v1
    v_lshlrev_b32 v2, 4, v2
    v_add_u32 v2, {CS}, v2
    """)
    for i in range(8):
        k.e(f"ds_read_b128 v[{T+4*i}:{T+4*i+3}], v15 offset:{i*1024}")
    for i in range(8):
        k.e(f"ds_read_b128 v[{T+32+4*i}:{T+32+4*i+3}], v2 offset:{(i//4)*128 + (i%4)*32}")
    k.e(f"""
    v_mul_f32 v10, {QSCALE}, v13
    v_mul_f32 v11, {QSCALE}, v12
    v_lshlrev_b32 v3, 4, v1               ; Q voffset
    v_and_b32 v4, 0x33, v1
    v_and_b32 v5, 4, v1
    v_lshl_add_u32 v4, v5, 1, v4
    v_bfe_u32 v5, v1, 3, 1
    v_lshl_add_u32 v4, v5, 2, v4
    v_lshlrev_b32 v4, 4, v4
    s_lshl_b32 s35, s34, 16
    s_lshl_b32 s37, s32, 10
    s_add_u32 s35, s35, s37
    s_add_u32 s35, s35, {QF}
    s_add_u32 s38, s35, 0x10000
    s_lshl_b32 s39, s34, 17
    s_lshl_b32 s37, s32, 11
    s_add_u32 s39, s39, s37
    s_add_u32 s39, s39, {KV}
    s_add_u32 s42, s39, 0x20000
    s_waitcnt lgkmcnt(0)
    """)
    for t in range(2):
        al, be = (10,11) if t==0 else (13,12)
        for i in range(16):
            a = AC+16*t+i
            k.e(f"""
            v_add_f32 v{a}, v{a}, v{T+16*t+i}
            v_mul_f32 v{a}, v{al}, v{a}
            v_fma_f32 v{a}, -v{be}, v{T+32+16*t+i}, v{a}
            """)
        for i in range(8):
            a = AC+16*t+2*i
            k.e(f"v_cvt_pk_bf16_f32 v{WF+8*t+i}, v{a}, v{a+1}")
        va = "v3" if t==0 else "v4"
        so = ("s35","s38") if t==0 else ("s39","s42")
        k.e(f"""
        buffer_store_dwordx4 v[{WF+8*t}:{WF+8*t+3}], {va}, s[16:19], {so[0]} offen
        buffer_store_dwordx4 v[{WF+8*t+4}:{WF+8*t+7}], {va}, s[16:19], {so[1]} offen
        """)
    k.e(f"s_branch {end}\n{lv}:")
    k.e(f"""
    s_lshl_b32 s35, s23, 8
    s_add_u32 s35, s35, {AB}
    v_and_b32 v2, 31, v1
    v_lshl_add_u32 v2, v2, 2, s35
    ds_write_b32 v2, v13
    ds_write_b32 v2, v12 offset:128
    v_lshrrev_b32 v2, 5, v1
    v_lshl_add_u32 v2, v2, 4, s35
    ds_read_b32 v14, v8 offset:256
    """)
    for i in range(4):
        k.e(f"ds_read_b128 v[{T+4*i}:{T+4*i+3}], v15 offset:{(8+i)*1024}")
    for i in range(8):
        k.e(f"ds_read_b128 v[{T+16+4*i}:{T+16+4*i+3}], v2 offset:{(i//4)*128 + (i%4)*32}")
    k.e(f"""
    v_bfe_u32 v3, v1, 4, 1
    v_lshlrev_b32 v3, 17, v3
    v_lshrrev_b32 v4, 5, v1
    v_lshl_add_u32 v3, v4, 9, v3
    v_and_b32 v4, 15, v1
    v_lshl_add_u32 v3, v4, 4, v3          ; V voffset
    s_lshl_b32 s39, s34, 17
    s_lshl_b32 s37, s32, 11
    s_add_u32 s39, s39, s37
    s_add_u32 s39, s39, {KV+1024}
    s_waitcnt lgkmcnt(0)
    """)
    for i in range(16):
        a = AC+32+i
        k.e(f"""
        v_add_f32 v{a}, v{a}, v{T+i}
        v_mul_f32 v{a}, v{T+16+i}, v{a}
        v_fma_f32 v{a}, -v{T+32+i}, v14, v{a}
        """)
    for i in range(8):
        a = AC+32+2*i
        k.e(f"v_cvt_pk_bf16_f32 v{WF+i}, v{a}, v{a+1}")
    k.e(f"""
    buffer_store_dwordx4 v[{WF}:{WF+3}], v3, s[16:19], s39 offen
    buffer_store_dwordx4 v[{WF+4}:{WF+7}], v3, s[16:19], s39 offen offset:256
    """)
    if L1:
        k.e(f"""
        s_cmp_lg_u32 s22, 7
        s_cbranch_scc1 {end}
        s_cmp_lg_u32 s2, 0
        s_cbranch_scc1 {end}
        v_mov_b32 v3, {SW}
        ds_read_b32 v2, v3
        v_mov_b32 v4, {SUMW}
        s_waitcnt lgkmcnt(0)
        buffer_store_dword v2, v4, s[16:19], 0 offen
        """)
    k.e(f"{end}:\ns_endpgm")
    return k, (256, 512, 151552)

def gen_attn(name):
    k = Kern(name, 104)
    S = (16, 32); O = 48; KR = 64; V = (68, 76); QR = 84; C = 88
    end = k.lab("end")
    k.e(f"""
    s_cmp_ge_u32 s2, 256
    s_cbranch_scc1 {end}
    s_load_dwordx2 s[20:21], s[0:1], 80
    """)
    wave_ids(k)
    k.e(f"""
    s_and_b32 s25, s2, 7
    s_lshr_b32 s26, s2, 3
    s_lshr_b32 s27, s26, 3
    s_lshl_b32 s25, s25, 2
    s_add_u32 s25, s25, s27          ; head
    s_and_b32 s26, s26, 7
    s_lshl_b32 s26, s26, 3
    s_add_u32 s26, s26, s22
    v_lshlrev_b32 v4, 4, v1          ; lane*16
    s_lshl_b32 s28, s25, 16
    s_lshl_b32 s29, s26, 10
    s_add_u32 s28, s28, s29
    s_add_u32 s28, s28, {QF}
    s_lshl_b32 s30, s25, 17
    s_add_u32 s30, s30, {KV}
    s_waitcnt lgkmcnt(0)
    """)
    srd(k, 16, 20, WS_BYTES)
    k.e(f"buffer_load_dwordx4 v[{QR}:{QR+3}], v4, s[16:19], s28 offen")
    chunks = [(0,8),(8,16),(16,32),(32,64)]
    cnt = []
    k.e("s_lshl_b32 s31, s22, 10")
    for (a,b) in chunks:
        n = (b-a)*2//8
        cnt.append(n)
        for i in range(n):
            off = a*2048 + i*8192
            k.e(f"""
            s_add_u32 s32, s31, {off}
            s_mov_b32 m0, s32
            s_add_u32 s33, s30, s32
            buffer_load_dwordx4 v4, s[16:19], s33 offen lds
            """)
    k.e(f"""
    s_mov_b32 s34, 0x0000ffff
    s_mov_b32 s35, 0x0000ffff
    v_mov_b32 v5, 0xdddddddd
    v_mov_b32 v6, {ONES}
    """)
    for r in range(V[0], V[0]+16): k.e(f"v_mov_b32 v{r}, v6")
    def zeroO():
        for r in range(O, O+16): k.e(f"v_mov_b32 v{r}, 0")
    def qk(d, cop):
        k.e(f"v_mfma_f32_32x32x16_bf16 v[{d}:{d+15}], v[{KR}:{KR+3}], v[{QR}:{QR+3}], {cop}")
    def ex(c, a, b):
        for i in range(a, b): k.e(f"v_exp_f32 v{c+i}, v{c+i}")
    def sm(v, s):
        k.e(f"v_smfmac_f32_32x32x32_bf16 v[{O}:{O+15}], v[{v}:{v+3}], v[{s}:{s+7}], v5")
    def vread(v, off):
        k.e(f"""
        s_mov_b64 exec, s[34:35]
        ds_read_b128 v[{v}:{v+3}], v7 offset:{off+1024}
        ds_read_b128 v[{v+4}:{v+7}], v7 offset:{off+1280}
        s_mov_b64 exec, -1
        """)
    def tile(p, cop, first=False):
        c, n = S[p], S[1-p]; Vc, Vn = V[p], V[1-p]
        ex(c, 0, 2)
        if not first: sm(Vn+4, n+8)
        ex(c, 2, 4)
        k.e("s_waitcnt lgkmcnt(2)")
        qk(n, cop)
        k.e(f"ds_read_b128 v[{KR}:{KR+3}], v7 offset:{(p+2)*2048}")
        vread(Vn, (p+1)*2048)
        ex(c, 4, 10)
        k.e("s_waitcnt lgkmcnt(3)")
        sm(Vc, c)
        ex(c, 10, 16)
    def prologue(cop):
        k.e(f"v_mov_b32 v7, v4\nds_read_b128 v[{KR}:{KR+3}], v7\ns_waitcnt lgkmcnt(0)")
        qk(S[0], cop)
        k.e(f"ds_read_b128 v[{KR}:{KR+3}], v7 offset:2048")
        vread(V[0], 0)
        for r in range(S[1]+8, S[1]+16): k.e(f"v_mov_b32 v{r}, 0")
        k.e("s_nop 3")
    def loop(n, cop):
        l = k.lab("loop")
        k.e(f"s_mov_b32 s36, {n}\n.p2align 5\n{l}:")
        tile(0, cop); tile(1, cop)
        k.e(f"""
        v_add_u32 v7, 0x1000, v7
        s_sub_u32 s36, s36, 1
        s_cmp_lg_u32 s36, 0
        s_cbranch_scc1 {l}
        """)
    zeroO()
    rem = sum(cnt)
    seg = [3, 4, 8, 17]
    for ci in range(4):
        rem -= cnt[ci]
        k.e(f"s_waitcnt vmcnt({rem})\ns_barrier")
        if ci == 0: prologue("0")
        loop(seg[ci], "0")
    fin = k.lab("fin"); slow = k.lab("slow"); done = k.lab("done")
    k.e(f"{fin}:")
    k.e("s_nop 1")
    sm(V[1]+4, S[1]+8)
    k.e(f"""
    s_waitcnt lgkmcnt(0)
    s_nop 7
    s_nop 3
    v_max3_f32 v8, abs(v{O}), abs(v{O+1}), abs(v{O+2})
    v_max3_f32 v8, abs(v{O+3}), abs(v{O+4}), v8
    v_max3_f32 v8, abs(v{O+5}), abs(v{O+6}), v8
    v_max3_f32 v8, abs(v{O+7}), v8, v8
    v_add_f32 v9, v{O}, v{O+1}
    v_add_f32 v10, v{O+2}, v{O+3}
    v_add_f32 v11, v{O+4}, v{O+5}
    v_add_f32 v12, v{O+6}, v{O+7}
    v_add_f32 v9, v9, v10
    v_add_f32 v11, v11, v12
    v_add_f32 v9, v9, v11
    s_mov_b32 s38, 0x17800000          ; 2^-80
    s_mov_b32 s39, 0x71800000          ; 2^100
    s_mov_b32 s40, 0x7f000000          ; 2^127
    v_cmp_le_f32 s[42:43], s38, v{O+8}
    v_cmp_ge_f32 s[44:45], s39, v{O+8}
    v_cmp_gt_f32 s[46:47], s40, v8
    v_cmp_o_f32 vcc, v9, v9
    s_and_b64 s[42:43], s[42:43], s[44:45]
    s_and_b64 s[46:47], s[46:47], vcc
    s_and_b64 s[42:43], s[42:43], s[46:47]
    s_cmp_eq_u64 s[42:43], -1
    s_cbranch_scc1 {done}
    s_cmp_eq_u32 s37, 1
    s_cbranch_scc1 {done}
    s_branch {slow}
    {done}:
    v_rcp_f32 v8, v{O+8}
    s_lshl_b32 s28, s26, 15
    s_lshl_b32 s29, s25, 10
    s_add_u32 s28, s28, s29
    s_add_u32 s28, s28, {OF}
    """)
    for i in range(8): k.e(f"v_mul_f32 v{O+i}, v{O+i}, v8")
    for i in range(4): k.e(f"v_cvt_pk_bf16_f32 v{12+i}, v{O+2*i}, v{O+2*i+1}")
    k.e(f"buffer_store_dwordx4 v[12:15], v4, s[16:19], s28 offen\ns_branch {end}")
    ml = k.lab("maxloop")
    k.e(f"""
    {slow}:
    s_mov_b32 s37, 1
    v_mov_b32 v7, v4
    v_mov_b32 v8, 0xff800000
    s_mov_b32 s36, 64
    {ml}:
    ds_read_b128 v[{KR}:{KR+3}], v7
    s_waitcnt lgkmcnt(0)
    """)
    qk(S[0], "0")
    k.e("v_add_u32 v7, 0x800, v7\ns_nop 7\ns_nop 3")
    for i in range(8): k.e(f"v_max3_f32 v8, v{S[0]+2*i}, v{S[0]+2*i+1}, v8")
    k.e(f"""
    s_sub_u32 s36, s36, 1
    s_cmp_lg_u32 s36, 0
    s_cbranch_scc1 {ml}
    v_mov_b32 v9, v8
    s_nop 1
    v_permlane32_swap_b32 v8, v9
    s_nop 1
    v_max_f32 v8, v8, v9
    """)
    for r in range(C, C+16): k.e(f"v_sub_f32 v{r}, 0, v8")
    zeroO()
    cop = f"v[{C}:{C+15}]"
    prologue(cop)
    loop(32, cop)
    k.e(f"s_branch {fin}")
    k.e(f"{end}:\ns_endpgm")
    idx = next(i for i,l in enumerate(k.lines) if "s_mov_b32 s34, 0x0000ffff" in l)
    k.lines.insert(idx, "    s_mov_b32 s37, 0")
    return k, (256, 512, 135168)

def gen_oproj(name, layer):
    k = Kern(name, 128)
    L1 = layer == 0
    XR = 32; AC = 96; WF = 112
    EX, SM = 65536, 65536+16384
    end = k.lab("end")
    k.e(f"""
    s_cmp_ge_u32 s2, 256
    s_cbranch_scc1 {end}
    s_load_dwordx2 s[4:5], s[0:1], 0
    s_load_dwordx2 s[6:7], s[0:1], 16
    s_load_dwordx2 s[20:21], s[0:1], 80
    s_load_dwordx2 s[40:41], s[0:1], 32
    """)
    wave_ids(k)
    k.e(f"""
    s_and_b32 s25, s2, 7
    s_lshr_b32 s26, s2, 3
    s_lshr_b32 s27, s26, 3
    s_lshl_b32 s25, s25, 2
    s_add_u32 s25, s25, s27
    s_and_b32 s26, s26, 7
    s_and_b32 s23, s22, 1            ; tt
    s_bfe_u32 s27, s22, 0x10001      ; ct
    s_lshr_b32 s24, s22, 2           ; kh
    s_and_b32 s28, s22, 3            ; ww
    v_mov_b32 v3, 0
    v_lshlrev_b32 v2, 2, v0
    v_add_u32 v2, {SM}, v2
    ds_write_b32 v2, v3
    v_lshrrev_b32 v2, 2, v1
    v_lshlrev_b32 v2, 10, v2
    v_and_b32 v3, 3, v1
    v_lshl_add_u32 v4, v3, 4, v2
    s_lshl_b32 s29, s24, 8
    s_lshl_b32 s28, s28, 4
    s_add_u32 s28, s28, s29          ; row0
    s_lshl_b32 s30, s28, 10
    s_lshl_b32 s29, s26, 7
    s_add_u32 s30, s30, s29
    s_lshl_b32 s31, s28, 6
    s_lshl_b32 s32, s25, 1
    s_add_u32 s32, s32, s23
    v_lshlrev_b32 v5, 4, v1          ; lane*16
    s_lshl_b32 s33, s32, 15
    s_lshl_b32 s29, s24, 14
    s_add_u32 s33, s33, s29
    s_add_u32 s33, s33, {OF}
    s_lshl_b32 s37, s26, 2
    s_lshl_b32 s29, s27, 1
    s_add_u32 s37, s37, s29
    s_add_u32 s37, s37, s24          ; ks
    s_lshl_b32 s38, s37, 5
    v_lshrrev_b32 v2, 5, v1
    v_lshlrev_b32 v6, 3, v2          ; hh*8
    v_and_b32 v7, 31, v1
    s_waitcnt lgkmcnt(0)
    """)
    srd(k, 12, 6, 512*512*2)
    srd(k, 16, 20, WS_BYTES)
    srd(k, 44, 40, 1024)
    if L1: srd(k, 8, 4, 2048*512*2)
    k.e(f"""
    buffer_load_dwordx2 v[12:13], v6, s[44:47], s38 offen
    buffer_load_dwordx2 v[14:15], v6, s[44:47], s38 offen offset:16
    """)
    if L1:
        k.e(f"""
        v_lshl_add_u32 v2, v7, 10, v6
        s_lshl_b32 s34, s32, 15
        s_add_u32 s34, s34, s38
        buffer_load_dwordx2 v[8:9], v2, s[8:11], s34 offen
        buffer_load_dwordx2 v[10:11], v2, s[8:11], s34 offen offset:16
        """)
    else:
        k.e(f"""
        s_lshl_b32 s34, s32, 15
        s_lshl_b32 s35, s37, 10
        s_add_u32 s34, s34, s35
        s_add_u32 s34, s34, {X1F}
        buffer_load_dwordx4 v[8:11], v5, s[16:19], s34 offen
        v_lshlrev_b32 v2, 2, v7
        s_lshl_b32 s34, s32, 7
        s_add_u32 s34, s34, {STATS}
        s_add_u32 s35, s34, 8192
        buffer_load_dword v16, v2, s[16:19], s34 offen
        buffer_load_dword v17, v2, s[16:19], s35 offen
        s_add_u32 s34, s38, {X2S}
        buffer_load_dwordx2 v[20:21], v6, s[16:19], s34 offen
        buffer_load_dwordx2 v[22:23], v6, s[16:19], s34 offen offset:16
        v_mov_b32 v2, {SELI}
        buffer_load_dword v18, v2, s[16:19], 0 offen
        """)
    for q in range(4):
        for c in range(2):
            k.e(f"""
            s_add_u32 s34, s30, {q*64*1024 + c*64}
            s_add_u32 s35, s31, {c*32768 + q*4096}
            s_mov_b32 m0, s35
            buffer_load_dwordx4 v4, s[12:15], s34 offen lds
            """)
        k.e(f"s_add_u32 s34, s33, {q*4096}")
        for u in range(4):
            r = XR + (q*4+u)*4
            k.e(f"buffer_load_dwordx4 v[{r}:{r+3}], v5, s[16:19], s34 offen offset:{u*1024}")
    k.e(f"""
    v_lshrrev_b32 v2, 5, v1
    v_lshlrev_b32 v2, 2, v2
    v_bfe_u32 v3, v1, 2, 2
    v_add_u32 v2, v2, v3
    v_lshlrev_b32 v2, 6, v2
    v_bfe_u32 v3, v1, 4, 1
    v_lshl_add_u32 v2, v3, 5, v2
    v_and_b32 v3, 3, v1
    v_lshl_add_u32 v2, v3, 3, v2
    s_lshl_b32 s34, s24, 14
    s_lshl_b32 s35, s27, 15
    s_add_u32 s34, s34, s35
    v_add_u32 v24, s34, v2
    s_mov_b32 s36, {ONES}
    """)
    for r in range(AC, AC+16): k.e(f"v_mov_b32 v{r}, 0")
    WB = [112,116,120,124]
    for q in range(4):
        k.e(f"s_waitcnt vmcnt({6*(3-q)})" + (" lgkmcnt(0)" if q==0 else "") + "\ns_barrier")
        for u in range(4):
            for sec in range(2):
                d = WB[u]+sec*2
                k.e(f"ds_read_b64_tr_b16 v[{d}:{d+1}], v24 offset:{(q*64+16*u+8*sec)*64}")
        for u in range(4):
            x = XR+(q*4+u)*4
            k.e(f"s_waitcnt lgkmcnt({2*(3-u)})")
            k.e(f"v_mfma_f32_32x32x16_bf16 v[{AC}:{AC+15}], v[{WB[u]}:{WB[u]+3}], v[{x}:{x+3}], v[{AC}:{AC+15}]")
    l1 = k.lab("x1"); l2 = k.lab("x2")
    k.e(f"""
    s_lshl_b32 s34, s22, 11
    s_add_u32 s34, s34, {EX}
    v_add_u32 v2, s34, v5
    s_xor_b32 s34, s34, 0x2000
    v_add_u32 v3, s34, v5
    s_nop 7
    s_cmp_eq_u32 s24, 1
    s_cbranch_scc1 {l1}
    ds_write_b128 v2, v[{AC+8}:{AC+11}]
    ds_write_b128 v2, v[{AC+12}:{AC+15}] offset:1024
    s_branch {l2}
    {l1}:
    ds_write_b128 v2, v[{AC}:{AC+3}]
    ds_write_b128 v2, v[{AC+4}:{AC+7}] offset:1024
    """)
    for i in range(8): k.e(f"v_mov_b32 v{AC+i}, v{AC+8+i}")
    k.e(f"{l2}:")
    if not L1:
        rowparams(k, 16, 17, 19, 25, 26)
        for i in range(4):
            k.e(f"""
            v_lshlrev_b32 v26, 16, v{8+i}
            v_and_b32 v27, 0xffff0000, v{8+i}
            v_sub_f32 v28, v26, v19
            v_sub_f32 v29, v27, v19
            v_cvt_pk_bf16_f32 v28, v28, v29
            v_and_b32 v29, 0xffff0000, v28
            v_lshlrev_b32 v28, 16, v28
            v_mul_f32 v28, v28, v25
            v_mul_f32 v29, v29, v25
            v_cvt_pk_bf16_f32 v28, v28, v29
            v_and_b32 v29, 0xffff0000, v28
            v_lshlrev_b32 v28, 16, v28
            v_add_f32 v28, v28, v26
            v_add_f32 v29, v29, v27
            v_cvt_pk_bf16_f32 v{8+i}, v28, v29
            """)
        k.e(f"""
        s_lshl_b32 s34, s32, 5
        v_add_u32 v26, s34, v7
        v_cmp_eq_u32 vcc, v26, v18
        """)
        for i in range(4): k.e(f"v_cndmask_b32 v{8+i}, v{8+i}, v{20+i}, vcc")
    k.e(f"""
    s_waitcnt lgkmcnt(0)
    s_barrier
    ds_read_b128 v[{XR}:{XR+3}], v3
    ds_read_b128 v[{XR+4}:{XR+7}], v3 offset:1024
    v_mov_b32 v16, 0
    v_mov_b32 v17, 0
    v_mov_b32 v18, 0
    s_lshl_b32 s34, s32, 15
    s_lshl_b32 s35, s37, 10
    s_add_u32 s34, s34, s35
    s_add_u32 s34, s34, {X1F if L1 else X3F}
    s_lshl_b32 s35, s23, 7
    s_add_u32 s35, s35, {SM}
    v_lshl_add_u32 v2, v7, 2, s35
    s_waitcnt lgkmcnt(0)
    """)
    for i in range(8): k.e(f"v_add_f32 v{AC+i}, v{AC+i}, v{XR+i}")
    for i in range(4):
        k.e(f"""
        v_cvt_pk_bf16_f32 v26, v{AC+2*i}, v{AC+2*i+1}
        v_and_b32 v27, 0xffff0000, v26
        v_lshlrev_b32 v26, 16, v26
        v_and_b32 v29, 0xffff0000, v{8+i}
        v_lshlrev_b32 v28, 16, v{8+i}
        v_add_f32 v26, v26, v28
        v_add_f32 v27, v27, v29
        v_cvt_pk_bf16_f32 v{20+i}, v26, v27
        """)
    k.e("buffer_store_dwordx4 v[20:23], v5, s[16:19], s34 offen")
    for i in range(4):
        k.e(f"""
        v_dot2c_f32_bf16 v16, s36, v{20+i}
        v_dot2c_f32_bf16 v17, v{20+i}, v{20+i}
        v_dot2c_f32_bf16 v18, v{20+i}, v{12+i}
        """)
    k.e(f"""
    ds_add_f32 v2, v16
    ds_add_f32 v2, v17 offset:256
    ds_add_f32 v2, v18 offset:512
    s_waitcnt lgkmcnt(0)
    s_barrier
    s_cmp_ge_u32 s22, 3
    s_cbranch_scc1 {end}
    s_lshl_b32 s34, s22, 8
    s_add_u32 s34, s34, {SM}
    v_lshl_add_u32 v2, v1, 2, s34
    ds_read_b32 v3, v2
    s_lshl_b32 s34, s22, 13
    s_lshl_b32 s35, s25, 8
    s_add_u32 s34, s34, s35
    s_add_u32 s34, s34, {STATS + (0 if L1 else 24576)}
    v_lshlrev_b32 v2, 2, v1
    s_waitcnt lgkmcnt(0)
    buffer_atomic_add_f32 v3, v2, s[16:19], s34 offen
    {end}:
    s_endpgm
    """)
    return k, (256, 512, 65536+16384+2048)

def gen_fin(name):
    k = Kern(name, 32)
    end = k.lab("end")
    k.e(f"""
    s_cmp_ge_u32 s2, 256
    s_cbranch_scc1 {end}
    s_load_dwordx2 s[4:5], s[0:1], 64
    s_load_dwordx2 s[20:21], s[0:1], 80
    """)
    wave_ids(k)
    k.e(f"""
    s_lshr_b32 s25, s2, 2            ; tile
    s_and_b32 s26, s2, 3
    s_lshl_b32 s26, s26, 3
    s_add_u32 s26, s26, s22          ; ks
    v_lshlrev_b32 v5, 4, v1
    v_and_b32 v7, 31, v1
    v_lshlrev_b32 v2, 2, v7
    s_lshl_b32 s34, s25, 15
    s_lshl_b32 s35, s26, 10
    s_add_u32 s34, s34, s35
    s_add_u32 s34, s34, {X3F}
    s_lshl_b32 s35, s25, 7
    s_add_u32 s35, s35, {STATS+24576}
    s_add_u32 s36, s35, 8192
    s_waitcnt lgkmcnt(0)
    """)
    srd(k, 8, 4, 2048*512*2)
    srd(k, 16, 20, WS_BYTES)
    k.e(f"""
    buffer_load_dword v16, v2, s[16:19], s35 offen
    buffer_load_dword v17, v2, s[16:19], s36 offen
    buffer_load_dwordx4 v[8:11], v5, s[16:19], s34 offen
    v_lshrrev_b32 v3, 5, v1
    v_lshlrev_b32 v3, 3, v3
    v_lshl_add_u32 v3, v7, 10, v3
    s_lshl_b32 s34, s25, 15
    s_lshl_b32 s35, s26, 5
    s_add_u32 s34, s34, s35
    s_waitcnt vmcnt(1)
    """)
    rowparams(k, 16, 17, 19, 25, 26)
    k.e("s_waitcnt vmcnt(0)")
    for i in range(4):
        k.e(f"""
        v_lshlrev_b32 v26, 16, v{8+i}
        v_and_b32 v27, 0xffff0000, v{8+i}
        v_sub_f32 v28, v26, v19
        v_sub_f32 v29, v27, v19
        v_cvt_pk_bf16_f32 v28, v28, v29
        v_and_b32 v29, 0xffff0000, v28
        v_lshlrev_b32 v28, 16, v28
        v_mul_f32 v28, v28, v25
        v_mul_f32 v29, v29, v25
        v_cvt_pk_bf16_f32 v28, v28, v29
        v_and_b32 v29, 0xffff0000, v28
        v_lshlrev_b32 v28, 16, v28
        v_add_f32 v28, v28, v26
        v_add_f32 v29, v29, v27
        v_cvt_pk_bf16_f32 v{8+i}, v28, v29
        """)
    k.e(f"""
    buffer_store_dwordx2 v[8:9], v3, s[8:11], s34 offen
    buffer_store_dwordx2 v[10:11], v3, s[8:11], s34 offen offset:16
    {end}:
    s_endpgm
    """)
    return k, (256, 512, 0)

def dpp_reduce(k, op, v):
    for c in ("row_shr:1","row_shr:2","row_shr:4","row_shr:8"):
        k.e(f"{op}_dpp v{v}, v{v}, v{v} {c} row_mask:0xf bank_mask:0xf")
    k.e(f"{op}_dpp v{v}, v{v}, v{v} row_bcast:15 row_mask:0xa bank_mask:0xf")
    k.e(f"{op}_dpp v{v}, v{v}, v{v} row_bcast:31 row_mask:0xc bank_mask:0xf")

def tr16_base(k, v, sbase):
    k.e(f"""
    v_lshrrev_b32 v2, 2, v1
    v_lshlrev_b32 v2, 5, v2
    v_and_b32 v3, 3, v1
    v_lshl_add_u32 v2, v3, 3, v2
    v_add_u32 v{v}, {sbase}, v2
    """)

def ln_row(k, src, m, rd, dst):
    for i in range(4):
        k.e(f"""
        v_lshlrev_b32 v26, 16, v{src+i}
        v_and_b32 v27, 0xffff0000, v{src+i}
        v_sub_f32 v26, v26, v{m}
        v_sub_f32 v27, v27, v{m}
        v_cvt_pk_bf16_f32 v26, v26, v27
        v_and_b32 v27, 0xffff0000, v26
        v_lshlrev_b32 v26, 16, v26
        v_mul_f32 v26, v26, v{rd}
        v_mul_f32 v27, v27, v{rd}
        v_cvt_pk_bf16_f32 v{dst+i}, v26, v27
        """)

def sigmoid(k, x, d):
    k.e(f"""
    v_mul_f32 v{d}, 0xbfb8aa3b, v{x}
    v_exp_f32 v{d}, v{d}
    v_add_f32 v{d}, 1.0, v{d}
    v_rcp_f32 v{d}, v{d}
    """)

def gen_ffa(name, layer):
    k = Kern(name, 112)
    ST = STATS + layer*24576
    XF = X1F if layer == 0 else X3F
    RW = 32768; RED = 32768+4096
    WF = 64
    end = k.lab("end")
    k.e(f"""
    s_cmp_ge_u32 s2, 112
    s_cbranch_scc1 {end}
    s_load_dwordx4 s[4:7], s[0:1], 40
    s_load_dwordx2 s[20:21], s[0:1], 80
    """)
    wave_ids(k)
    k.e(f"""
    v_lshlrev_b32 v4, 5, v0
    v_lshrrev_b32 v2, 1, v1
    v_mul_u32_u24 v2, 3584, v2
    v_and_b32 v3, 1, v1
    v_lshl_add_u32 v5, v3, 4, v2
    s_mul_i32 s30, s22, {128*3584}
    s_lshl_b32 s29, s2, 5
    s_add_u32 s30, s30, s29
    s_lshl_b32 s31, s22, 13
    s_waitcnt lgkmcnt(0)
    """)
    srd(k, 8, 4, 512*1792*2)
    srd(k, 12, 6, 512*1792*2)
    srd(k, 16, 20, WS_BYTES)
    k.e(f"s_mov_b32 s34, {ST}\ns_mov_b32 s35, {ST+8192}\ns_mov_b32 s36, {ST+16384}\nv_mov_b32 v2, {SUMW}")
    for a in range(3):
        k.e(f"""
        buffer_load_dwordx4 v[{32+8*a}:{35+8*a}], v4, s[16:19], s{34+a} offen
        buffer_load_dwordx4 v[{36+8*a}:{39+8*a}], v4, s[16:19], s{34+a} offen offset:16
        """)
    k.e("buffer_load_dword v6, v2, s[16:19], 0 offen")
    for ks in range(4):
        for mtx in range(2):
            k.e(f"""
            s_add_u32 s34, s30, {ks*32*3584}
            s_add_u32 s35, s31, {(ks*2+mtx)*1024}
            s_mov_b32 m0, s35
            buffer_load_dwordx4 v5, s[{8+4*mtx}:{11+4*mtx}], s34 offen lds
            """)
    k.e("v_mov_b32 v7, 0\nv_lshlrev_b32 v8, 3, v0\nv_sub_u32 v8, 2047, v8\ns_waitcnt vmcnt(8)")
    for i in range(8):
        rowparams(k, 32+i, 40+i, 10, 11, 12)
        k.e(f"""
        v_fma_f32 v12, -v10, v6, v{48+i}
        v_mul_f32 v12, v12, v11
        v_cvt_pk_bf16_f32 v12, v12, v12
        v_ashrrev_i32 v13, 31, v12
        v_or_b32 v13, 0x80000000, v13
        v_xor_b32 v12, v12, v13
        v_and_b32 v12, 0xffff0000, v12
        v_subrev_u32 v13, {i}, v8
        v_or_b32 v12, v12, v13
        v_max_u32 v7, v7, v12
        """)
    dpp_reduce(k, "v_max_u32", 7)
    k.e(f"""
    v_readlane_b32 s34, v7, 63
    s_lshl_b32 s35, s22, 2
    s_add_u32 s35, s35, {RED}
    v_mov_b32 v2, s35
    v_mov_b32 v3, s34
    ds_write_b32 v2, v3
    v_mov_b32 v2, {RED}
    s_waitcnt lgkmcnt(0)
    s_barrier
    ds_read_b128 v[8:11], v2
    s_waitcnt lgkmcnt(0)
    v_max_u32 v8, v8, v9
    v_max3_u32 v8, v8, v10, v11
    v_readfirstlane_b32 s34, v8          ; key
    s_and_b32 s35, s34, 0xffff
    s_sub_u32 s35, 2047, s35             ; sel
    s_and_b32 s34, s34, 0xffff0000
    s_ashr_i32 s36, s34, 31
    s_not_b32 s36, s36
    s_or_b32 s36, s36, 0x80000000
    s_xor_b32 s34, s34, s36
    s_and_b32 s34, s34, 0xffff0000
    s_lshr_b32 s36, s35, 5
    s_lshl_b32 s36, s36, 15
    s_and_b32 s37, s35, 31
    s_lshl_b32 s37, s37, 4
    s_add_u32 s36, s36, s37
    s_add_u32 s36, s36, {XF}
    v_lshlrev_b32 v2, 9, v1
    buffer_load_dwordx4 v[8:11], v2, s[16:19], s36 offen
    s_lshl_b32 s37, s35, 2
    s_add_u32 s37, s37, {ST}
    s_add_u32 s38, s37, 8192
    v_mov_b32 v2, 0
    buffer_load_dword v16, v2, s[16:19], s37 offen
    buffer_load_dword v17, v2, s[16:19], s38 offen
    """)
    tr16_base(k, 14, "s31")
    k.e("s_waitcnt vmcnt(3)")
    for t in range(8):
        for sec in range(2):
            d = WF+4*t+2*sec
            k.e(f"ds_read_b64_tr_b16 v[{d}:{d+1}], v14 offset:{t*1024+sec*512}")
    k.e(f"""
    s_lshl_b32 s36, s22, 10
    s_add_u32 s36, s36, {RW}
    v_lshrrev_b32 v2, 1, v1
    v_lshlrev_b32 v2, 5, v2
    v_and_b32 v3, 1, v1
    v_lshl_add_u32 v15, v3, 3, v2
    v_add_u32 v18, s36, v15
    s_lshl_b32 s37, s22, 8
    s_add_u32 s36, s36, s37
    v_lshrrev_b32 v2, 4, v1
    v_lshl_add_u32 v19, v2, 3, s36
    s_waitcnt vmcnt(0)
    """)
    rowparams(k, 16, 17, 20, 21, 22)
    ln_row(k, 8, 20, 21, 28)
    k.e(f"""
    ds_write_b64 v18, v[28:29]
    ds_write_b64 v18, v[30:31] offset:16
    """)
    lskip = k.lab("dump")
    k.e(f"""
    s_or_b32 s36, s2, s22
    s_cmp_lg_u32 s36, 0
    s_cbranch_scc1 {lskip}
    s_mov_b32 s36, {XS}
    s_mov_b32 s37, {X1R}
    buffer_store_dwordx2 v[28:29], v15, s[16:19], s36 offen
    buffer_store_dwordx2 v[30:31], v15, s[16:19], s36 offen offset:16
    buffer_store_dwordx2 v[8:9], v15, s[16:19], s37 offen
    buffer_store_dwordx2 v[10:11], v15, s[16:19], s37 offen offset:16
    v_mov_b32 v2, {SELI + 64*layer}
    v_mov_b32 v22, s35
    v_mov_b32 v23, s34
    buffer_store_dwordx2 v[22:23], v2, s[16:19], 0 offen
    {lskip}:
    s_waitcnt lgkmcnt(0)
    """)
    for ks in range(4):
        k.e(f"ds_read2_b64 v[{32+4*ks}:{35+4*ks}], v19 offset0:{8*ks} offset1:{8*ks+4}")
    for r in range(48,56): k.e(f"v_mov_b32 v{r}, 0")
    k.e("s_waitcnt lgkmcnt(0)")
    for ks in range(4):
        for mtx in range(2):
            b = WF+4*(ks*2+mtx); d = 48+4*mtx
            k.e(f"v_mfma_f32_16x16x32_bf16 v[{d}:{d+3}], v[{32+4*ks}:{35+4*ks}], v[{b}:{b+3}], v[{d}:{d+3}]")
    k.e(f"""
    s_lshl_b32 s36, s22, 2
    s_add_u32 s36, s36, {RED+64}
    v_and_b32 v2, 15, v1
    v_lshl_add_u32 v2, v2, 4, s36
    ds_write_b32 v2, v48
    ds_write_b32 v2, v52 offset:256
    v_and_b32 v3, 15, v1
    v_lshlrev_b32 v3, 4, v3
    v_add_u32 v3, {RED+64}, v3
    s_waitcnt lgkmcnt(0)
    s_barrier
    s_cmp_lg_u32 s22, 0
    s_cbranch_scc1 {end}
    ds_read_b128 v[8:11], v3
    ds_read_b128 v[12:15], v3 offset:256
    s_waitcnt lgkmcnt(0)
    v_add_f32 v8, v8, v9
    v_add_f32 v10, v10, v11
    v_add_f32 v12, v12, v13
    v_add_f32 v14, v14, v15
    v_add_f32 v8, v8, v10
    v_add_f32 v12, v12, v14
    """)
    rnd(k, 8); rnd(k, 12)
    sigmoid(k, 8, 9)
    k.e("v_mul_f32 v8, v8, v9")
    rnd(k, 8)
    k.e(f"""
    v_mul_f32 v8, v8, v12
    v_cvt_pk_bf16_f32 v8, v8, v8
    v_lshlrev_b32 v2, 1, v1
    s_lshl_b32 s36, s2, 5
    s_add_u32 s36, s36, {HV}
    s_mov_b64 exec, 0xffff
    buffer_store_short v8, v2, s[16:19], s36 offen
    {end}:
    s_endpgm
    """)
    return k, (112, 256, 32768+4096+1024)

def gen_ffb(name, layer):
    k = Kern(name, 160)
    HB = 57344; RED = HB+4096
    WF = 32; AF = 96
    end = k.lab("end")
    k.e(f"""
    s_cmp_ge_u32 s2, 32
    s_cbranch_scc1 {end}
    s_load_dwordx4 s[4:7], s[0:1], 56
    s_load_dwordx2 s[20:21], s[0:1], 80
    """)
    wave_ids(k)
    k.e(f"""
    v_lshrrev_b32 v2, 1, v1
    v_lshlrev_b32 v2, 10, v2
    v_and_b32 v3, 1, v1
    v_lshl_add_u32 v5, v3, 4, v2
    s_mul_i32 s30, s22, {448*1024}
    s_lshl_b32 s29, s2, 5
    s_add_u32 s30, s30, s29
    s_mul_i32 s31, s22, 14336
    v_lshlrev_b32 v4, 4, v1
    s_mul_i32 s32, s22, 896
    s_add_u32 s32, s32, {HV}
    s_waitcnt lgkmcnt(0)
    """)
    srd(k, 8, 4, 1792*512*2)
    srd(k, 12, 6, 2048*512*2)
    srd(k, 16, 20, WS_BYTES)
    k.e(f"""
    buffer_load_dwordx4 v[8:11], v4, s[16:19], s32 offen
    v_and_b32 v6, 15, v1
    v_lshlrev_b32 v6, 1, v6
    s_add_u32 s34, s29, {XS}
    s_add_u32 s35, s29, {X1R}
    buffer_load_ushort v12, v6, s[16:19], s34 offen
    buffer_load_ushort v13, v6, s[16:19], s35 offen
    v_mov_b32 v2, {SELI+64*layer}
    buffer_load_dwordx2 v[14:15], v2, s[16:19], 0 offen
    """)
    for ks in range(14):
        k.e(f"""
        s_add_u32 s34, s30, {ks*32*1024}
        s_add_u32 s35, s31, {ks*1024}
        s_mov_b32 m0, s35
        buffer_load_dwordx4 v5, s[8:11], s34 offen lds
        """)
    k.e(f"""
    s_lshl_b32 s36, s22, 10
    s_add_u32 s36, s36, {HB}
    v_add_u32 v18, s36, v4
    v_lshrrev_b32 v2, 4, v1
    v_lshl_add_u32 v19, v2, 3, s36
    s_waitcnt vmcnt(17)
    ds_write_b128 v18, v[8:11]
    s_waitcnt lgkmcnt(0)
    """)
    for ks in range(14):
        k.e(f"ds_read2_b64 v[{AF+4*ks}:{AF+4*ks+3}], v19 offset0:{8*ks} offset1:{8*ks+4}")
    tr16_base(k, 16, "s31")
    k.e("v_mov_b32 v20, 0\nv_mov_b32 v21, 0\nv_mov_b32 v22, 0\nv_mov_b32 v23, 0\ns_waitcnt vmcnt(0) lgkmcnt(0)")
    for half in range(2):
        for ks in range(7*half, 7*half+7):
            for sec in range(2):
                d = WF+4*ks+2*sec
                k.e(f"ds_read_b64_tr_b16 v[{d}:{d+1}], v16 offset:{ks*1024+sec*512}")
        k.e("s_waitcnt lgkmcnt(0)")
    for ks in range(14):
        k.e(f"v_mfma_f32_16x16x32_bf16 v[20:23], v[{AF+4*ks}:{AF+4*ks+3}], v[{WF+4*ks}:{WF+4*ks+3}], v[20:23]")
    k.e(f"""
    s_lshl_b32 s36, s22, 2
    s_add_u32 s36, s36, {RED}
    v_and_b32 v2, 15, v1
    v_lshl_add_u32 v2, v2, 4, s36
    ds_write_b32 v2, v20
    v_and_b32 v3, 15, v1
    v_lshlrev_b32 v3, 4, v3
    v_add_u32 v3, {RED}, v3
    s_waitcnt lgkmcnt(0)
    s_barrier
    s_cmp_lg_u32 s22, 0
    s_cbranch_scc1 {end}
    ds_read_b128 v[8:11], v3
    """)
    sigmoid(k, 15, 16)
    rnd(k, 16)
    k.e("""
    s_waitcnt lgkmcnt(0)
    v_add_f32 v8, v8, v9
    v_add_f32 v10, v10, v11
    v_add_f32 v8, v8, v10
    """)
    rnd(k, 8)
    k.e("v_mul_f32 v8, v8, v16")
    rnd(k, 8)
    k.e("v_lshlrev_b32 v12, 16, v12\nv_lshlrev_b32 v13, 16, v13\nv_add_f32 v8, v8, v12")
    rnd(k, 8)
    k.e("v_add_f32 v8, v8, v13\nv_cvt_pk_bf16_f32 v8, v8, v8\ns_mov_b64 exec, 0xffff")
    if layer == 0:
        k.e(f"s_add_u32 s34, s29, {X2S}\nbuffer_store_short v8, v6, s[16:19], s34 offen")
    else:
        k.e(f"v_lshl_add_u32 v6, v14, 10, v6\nbuffer_store_short v8, v6, s[12:15], s29 offen")
    k.e(f"{end}:\ns_endpgm")
    return k, (32, 256, 57344+4096+1024)

def gen_ffc(name):
    k = Kern(name, 112)
    RW = 49152; RED = RW+4096
    WF = 48
    end = k.lab("end")
    k.e(f"""
    s_cmp_ge_u32 s2, 32
    s_cbranch_scc1 {end}
    s_load_dwordx2 s[4:5], s[0:1], 8
    s_load_dwordx2 s[20:21], s[0:1], 80
    """)
    wave_ids(k)
    k.e(f"""
    v_lshrrev_b32 v2, 1, v1
    v_mul_u32_u24 v2, 3072, v2
    v_and_b32 v3, 1, v1
    v_lshl_add_u32 v5, v3, 4, v2
    s_mul_i32 s30, s22, {128*3072}
    s_lshl_b32 s29, s2, 5
    s_add_u32 s30, s30, s29
    s_mul_i32 s31, s22, 12288
    v_lshlrev_b32 v4, 4, v1
    s_mov_b32 s36, {ONES}
    s_waitcnt lgkmcnt(0)
    """)
    srd(k, 8, 4, 512*1536*2)
    srd(k, 16, 20, WS_BYTES)
    k.e(f"""
    s_mov_b32 s34, {X2S}
    buffer_load_dwordx4 v[8:11], v4, s[16:19], s34 offen
    v_mov_b32 v2, {SELI}
    buffer_load_dword v14, v2, s[16:19], 0 offen
    """)
    for ks in range(4):
        for st in range(3):
            k.e(f"""
            s_add_u32 s34, s30, {ks*32*3072 + st*1024}
            s_add_u32 s35, s31, {(ks*3+st)*1024}
            s_mov_b32 m0, s35
            buffer_load_dwordx4 v5, s[8:11], s34 offen lds
            """)
    k.e("v_mov_b32 v16, 0\nv_mov_b32 v17, 0\ns_waitcnt vmcnt(13)")
    for i in range(4):
        k.e(f"v_dot2c_f32_bf16 v16, s36, v{8+i}\nv_dot2c_f32_bf16 v17, v{8+i}, v{8+i}")
    dpp_reduce(k, "v_add_f32", 16)
    dpp_reduce(k, "v_add_f32", 17)
    k.e("""
    v_readlane_b32 s34, v16, 63
    v_readlane_b32 s35, v17, 63
    v_mov_b32 v16, s34
    v_mov_b32 v17, s35
    """)
    rowparams(k, 16, 17, 20, 21, 22)
    ln_row(k, 8, 20, 21, 28)
    k.e(f"""
    s_lshl_b32 s36, s22, 10
    s_add_u32 s36, s36, {RW}
    v_add_u32 v18, s36, v4
    ds_write_b128 v18, v[28:31]
    s_lshl_b32 s37, s22, 8
    s_add_u32 s36, s36, s37
    v_lshrrev_b32 v2, 4, v1
    v_lshl_add_u32 v19, v2, 3, s36
    s_waitcnt lgkmcnt(0)
    """)
    for ks in range(4):
        k.e(f"ds_read2_b64 v[{32+4*ks}:{35+4*ks}], v19 offset0:{8*ks} offset1:{8*ks+4}")
    tr16_base(k, 15, "s31")
    for r in range(96,108): k.e(f"v_mov_b32 v{r}, 0")
    k.e("s_waitcnt vmcnt(0) lgkmcnt(0)")
    for half in range(2):
        for t in range(6*half, 6*half+6):
            for sec in range(2):
                d = WF+4*t+2*sec
                k.e(f"ds_read_b64_tr_b16 v[{d}:{d+1}], v15 offset:{t*1024+sec*512}")
        k.e("s_waitcnt lgkmcnt(0)")
    for ks in range(4):
        for st in range(3):
            b = WF+4*(ks*3+st); d = 96+4*st
            k.e(f"v_mfma_f32_16x16x32_bf16 v[{d}:{d+3}], v[{32+4*ks}:{35+4*ks}], v[{b}:{b+3}], v[{d}:{d+3}]")
    k.e(f"""
    s_lshl_b32 s36, s22, 2
    s_add_u32 s36, s36, {RED}
    v_and_b32 v2, 15, v1
    v_lshl_add_u32 v2, v2, 4, s36
    ds_write_b32 v2, v96
    ds_write_b32 v2, v100 offset:256
    ds_write_b32 v2, v104 offset:512
    v_and_b32 v6, 15, v1
    v_lshlrev_b32 v3, 4, v6
    v_add_u32 v3, {RED}, v3
    s_waitcnt lgkmcnt(0)
    s_barrier
    s_cmp_lg_u32 s22, 0
    s_cbranch_scc1 {end}
    ds_read_b128 v[32:35], v3
    ds_read_b128 v[36:39], v3 offset:256
    ds_read_b128 v[40:43], v3 offset:512
    v_readfirstlane_b32 s34, v14         ; sel
    s_lshr_b32 s35, s34, 5               ; tile
    s_and_b32 s34, s34, 31               ; i
    v_bfe_u32 v2, v6, 2, 1
    v_lshlrev_b32 v2, 9, v2
    v_and_b32 v7, 3, v6
    v_lshl_add_u32 v2, v7, 1, v2
    v_lshrrev_b32 v7, 3, v6
    v_lshl_add_u32 v2, v7, 3, v2         ; q/k voffset
    v_lshlrev_b32 v7, 4, v6              ; v voffset = d*16
    s_lshl_b32 s36, s2, 16
    s_lshl_b32 s37, s35, 10
    s_add_u32 s36, s36, s37
    s_lshl_b32 s37, s34, 4
    s_add_u32 s36, s36, s37
    s_add_u32 s36, s36, {QF}             ; q soffset
    s_lshl_b32 s38, s2, 17
    s_lshl_b32 s37, s35, 11
    s_add_u32 s38, s38, s37
    s_add_u32 s38, s38, {KV}
    s_and_b32 s39, s34, 0x13
    s_and_b32 s37, s34, 4
    s_lshl_b32 s37, s37, 1
    s_add_u32 s39, s39, s37
    s_and_b32 s37, s34, 8
    s_lshr_b32 s37, s37, 1
    s_add_u32 s39, s39, s37              ; pi(i)
    s_lshl_b32 s40, s39, 4
    s_add_u32 s40, s40, s38              ; k soffset
    s_bfe_u32 s37, s39, 0x10003
    s_lshl_b32 s37, s37, 9
    s_add_u32 s38, s38, s37
    s_lshr_b32 s37, s39, 4
    s_lshl_b32 s37, s37, 8
    s_add_u32 s38, s38, s37
    s_and_b32 s37, s39, 7
    s_lshl_b32 s37, s37, 1
    s_add_u32 s38, s38, s37
    s_add_u32 s38, s38, 1024
    s_waitcnt lgkmcnt(0)
    """)
    for st in range(3):
        b = 32+4*st
        k.e(f"v_add_f32 v{b}, v{b}, v{b+1}\nv_add_f32 v{b+2}, v{b+2}, v{b+3}\nv_add_f32 v{b}, v{b}, v{b+2}")
    k.e(f"""
    v_mul_f32 v32, {QSCALE}, v32
    v_cvt_pk_bf16_f32 v32, v32, v32
    v_cvt_pk_bf16_f32 v36, v36, v36
    v_cvt_pk_bf16_f32 v40, v40, v40
    s_mov_b64 exec, 0xffff
    buffer_store_short v32, v2, s[16:19], s36 offen
    buffer_store_short v36, v2, s[16:19], s40 offen
    buffer_store_short v40, v7, s[16:19], s38 offen
    {end}:
    s_endpgm
    """)
    return k, (32, 256, 49152+4096+1024)

HEADER = open("interleave_layers__softmax_full_mha__moe_arch_mod__prompt.s.ref").read().split("; Override launch")[0]

def build(order, kernels):
    s = HEADER
    for n in order:
        g, b, lds = kernels[n][1]
        s += f"; @launch kernel={n} grid=({g},1,1) block=({b},1,1) lds={lds}\n"
    s += '.amdgcn_target "amdgcn-amd-amdhsa--gfx950"\n.text\n'
    for n,(k,_) in kernels.items(): s += k.text()
    s += '.section .rodata,"a"\n'
    for n,(k,_) in kernels.items(): s += k.desc()
    return s

if __name__ == "__main__":
    ks = {
      "qkv1_kernel": gen_qkv("qkv1_kernel", 0),
      "qkv3_kernel": gen_qkv("qkv3_kernel", 1),
      "attn_kernel": gen_attn("attn_kernel"),
      "oproj1_kernel": gen_oproj("oproj1_kernel", 0),
      "oproj3_kernel": gen_oproj("oproj3_kernel", 1),
      "fin_kernel": gen_fin("fin_kernel"),
      "ffa1_kernel": gen_ffa("ffa1_kernel", 0),
      "ffa3_kernel": gen_ffa("ffa3_kernel", 1),
      "ffb1_kernel": gen_ffb("ffb1_kernel", 0),
      "ffb3_kernel": gen_ffb("ffb3_kernel", 1),
      "ffc_kernel": gen_ffc("ffc_kernel"),
    }
    order = ["qkv1_kernel","attn_kernel","oproj1_kernel","ffa1_kernel","ffb1_kernel","qkv3_kernel","ffc_kernel",
             "attn_kernel","oproj3_kernel","fin_kernel","ffa3_kernel","ffb3_kernel"]
    out = sys.argv[1] if len(sys.argv)>1 else "interleave_layers__softmax_full_mha__moe_arch_mod__prompt.s"
    open(out,"w").write(build(order, ks))
    for n,(k,_) in ks.items(): print(n, "vgpr/sgpr used", k.used, file=sys.stderr)
```
